```python
import torch

def _softmax(x, axis=-1):
    return torch.softmax(x, dim=axis)

def _gelu(x):
    return torch.nn.functional.gelu(x, approximate='tanh')

def _silu(x):
    return torch.nn.functional.silu(x)

def _sigmoid(x):
    return torch.sigmoid(x)

def _layernorm(x, axis=-1, eps=1e-05):
    m = x.mean(dim=axis, keepdim=True)
    v = x.var(dim=axis, keepdim=True, unbiased=False)
    return (x - m) / torch.sqrt(v + eps)

def _scatter_add(tgt, idx, src, axis=0):
    return tgt.clone().index_add_(axis, idx, src)

def _segment_sum(src, seg, n):
    out = torch.zeros((n,) + src.shape[1:], dtype=src.dtype)
    return out.index_add_(0, seg, src)

def _pad(x, pw):
    flat = tuple((v for pair in reversed(pw) for v in pair))
    return torch.nn.functional.pad(x, flat)
kernel_name = 'gather_scatter__tensor_product_equiv_equiformer__graph'

def setup_inputs():

    _w = lambda a: (lambda t: t.to(torch.bfloat16) if t.is_floating_point() else t)(torch.as_tensor(a))
    N, deg, C, De = (10000, 16, 128, max(0, 1))
    E = N * deg
    src = (lambda lo, hi, *s: torch.randint(lo, hi, s))(0, N, E).to(torch.int64)
    dst = (lambda lo, hi, *s: torch.randint(lo, hi, s))(0, N, E).to(torch.int64)
    rvec = (lambda *s: torch.randn(*s, dtype=torch.bfloat16) * 0.05)(E, 3).to(float)
    rn = (torch.linalg.norm(rvec, dim=-1, keepdim=True) + 1e-06).to(float)
    rhat = (rvec / rn).to(float)
    eps = torch.zeros((3, 3, 3), dtype=float)
    eps[0, 1, 2] = eps[1, 2, 0] = eps[2, 0, 1] = 1.0
    eps[0, 2, 1] = eps[2, 1, 0] = eps[1, 0, 2] = -1.0
    return {'x': _w((lambda *s: torch.randn(*s, dtype=torch.bfloat16) * 0.4)(N, 4 * C).to(float)), 'rhat': _w(rhat), 'e_attr': _w((lambda *s: torch.randn(*s, dtype=torch.bfloat16) * 0.4)(E, De).to(float)), 'src': _w(src), 'dst': _w(dst), 'w_rad': _w((lambda *s: torch.randn(*s, dtype=torch.bfloat16) * 0.4)(De, 5 * C).to(float)), 'w_si0': _w((lambda *s: torch.randn(*s, dtype=torch.bfloat16) * 0.4)(2 * C, C).to(float)), 'w_si1': _w((lambda *s: torch.randn(*s, dtype=torch.bfloat16) * 0.05)(3 * C, C).to(float)), 'cg_eps': _w(eps)}

def reference(x, rhat, e_attr, src, dst, w_rad, w_si0, w_si1, cg_eps):
    N = x.shape[0]
    C = w_si0.shape[1]
    E = rhat.shape[0]
    x0 = x[:, :C].clone()
    x1 = x[:, C:].reshape(N, 3, C)
    R = (e_attr @ w_rad).reshape(E, 5, C)
    f0 = x0[src]
    f1 = x1[src]
    Y1 = rhat
    p00_0 = f0 * R[:, 0, :]
    p11_0 = torch.einsum('ejc,ej->ec', f1, Y1) * R[:, 1, :]
    p01_1 = torch.einsum('ec,ej->ejc', f0, Y1) * R[:, 2, :][:, None, :]
    p10_1 = f1 * R[:, 3, :][:, None, :]
    p11_1 = torch.einsum('ijk,ekc,ej->eic', cg_eps, f1, Y1) * R[:, 4, :][:, None, :]
    m0 = torch.concatenate([p00_0, p11_0], axis=-1) @ w_si0
    m1 = torch.einsum('ejp,pc->ejc', torch.concatenate([p01_1, p10_1, p11_1], axis=-1), w_si1)
    agg0 = _segment_sum(m0, dst, N)
    agg1 = _segment_sum(m1.reshape(E, 3 * C), dst, N).reshape(N, 3, C)
    gate = _sigmoid(agg0)
    out1 = agg1 * gate[:, None, :]
    return torch.concatenate([agg0, out1.reshape(N, 3 * C)], axis=-1)
```

```python
class A:
    def __init__(self):
        self.lines = []
        self._lab = 0
    def __call__(self, s=""):
        for l in s.split("\n"):
            self.lines.append(l)
    def label(self, name): self.lines.append(name + ":")
    def newlabel(self, p="L"):
        self._lab += 1
        return f"{p}_{self._lab}"
    def text(self): return "\n".join(self.lines) + "\n"
def v(i, n=1): return f"v{i}" if n == 1 else f"v[{i}:{i+n-1}]"
def s(i, n=1): return f"s{i}" if n == 1 else f"s[{i}:{i+n-1}]"
def a(i, n=1): return f"a{i}" if n == 1 else f"a[{i}:{i+n-1}]"
def kernel_desc(name, vgpr, sgpr=96, accum=None, wg_y=False):
    accum = accum or ((vgpr + 3) // 4 * 4)
    return f""".amdhsa_kernel {name}
  .amdhsa_next_free_vgpr {vgpr}
  .amdhsa_next_free_sgpr {sgpr}
  .amdhsa_accum_offset {accum}
  .amdhsa_group_segment_fixed_size 0
  .amdhsa_kernarg_size 96
  .amdhsa_user_sgpr_count 2
  .amdhsa_user_sgpr_kernarg_segment_ptr 1
  .amdhsa_system_sgpr_workgroup_id_x 1
  .amdhsa_float_denorm_mode_32 3
.end_amdhsa_kernel
"""
```

```python
import sys
from asmlib import A, v, s, kernel_desc

MAIN = "gather_scatter__tensor_product_equiv_equiformer__graph_kernel"
PREP = "gs_prep_kernel"

N, E = 10000, 160000
NB, NPB = 250, 40
NW, EPC = 64, 2500
CAP = 32
SLOT_OFF = 0
CNT_OFF = 0x600000
OVF_OFF = 0x620000
OVF_STRIDE = 30720
WF_OFF = 0x800000
WS_LIMIT = 0x828000
STAMP_OFF = 0x900000
OOB = 0x40000000

NODE_STRIDE = 1440
HALF_STRIDE = NPB * NODE_STRIDE
KSTEPS = 240
SRC_L = 2 * HALF_STRIDE
NENT = KSTEPS * 4 + 4
COEF_L = SRC_L + NENT * 4
HIST_L = COEF_L + NENT * 8
MISC_L = HIST_L + 256
FLAG_L = MISC_L
CTR_L = MISC_L + 4
READY_L = MISC_L + 16
LDS_MAIN = MISC_L + 64
TERM = 0x7fffffff


class Cfg:
    D = 4
    NF = 5
    stamps = False
    prefetch = 0
    pf_rows = 6000
    gprio = 2
    spin = 200000
    sleep = 2
    def __init__(self, **kw):
        for k, val in kw.items():
            assert hasattr(self, k), k
            setattr(self, k, val)


def srd(g, base, ptr, size):
    if base != ptr:
        g(f"s_mov_b32 s{base}, s{ptr}")
        g(f"s_mov_b32 s{base+1}, s{ptr+1}")
    g(f"s_mov_b32 s{base+2}, {size:#x}")
    g(f"s_mov_b32 s{base+3}, 0x20000")


def stamp(g, cfg, idx, kern, sreg=90):
    if not cfg.stamps:
        return
    raise NotImplementedError


def gen_prep(g, cfg):
    NT = 640
    NWF = 16
    npf = 8 * cfg.prefetch
    G1 = NW + NWF + npf
    g(f".globl {PREP}\n.p2align 8\n.type {PREP},@function\n{PREP}:")
    g(f"""
    s_cmp_ge_u32 s2, {G1}
    s_cbranch_scc1 P_END
    s_load_dwordx2 s[6:7], s[0:1], 88
    s_cmp_ge_u32 s2, {NW}
    s_cbranch_scc1 P_OTHER
    s_load_dwordx8 s[8:15], s[0:1], 8
    v_lshlrev_b32 v1, 4, v0             ; t*16
    v_mul_u32_u24 v2, 24, v0            ; t*24
    v_lshlrev_b32 v3, 3, v0             ; t*8
    v_lshlrev_b32 v4, 2, v0             ; t*4
    v_mov_b32 v5, 0
    v_mov_b32 v6, 1
    s_mul_i32 s36, s2, {EPC*4}
    s_mul_i32 s37, s2, {EPC*6}
    s_mul_i32 s38, s2, {EPC*2}
    s_waitcnt lgkmcnt(0)""")
    srd(g, 16, 8, E * 6)
    srd(g, 20, 10, E * 2)
    srd(g, 24, 12, E * 4)
    srd(g, 28, 14, E * 4)
    srd(g, 32, 6, WS_LIMIT)
    g(f"""
    v_cmp_gt_u32 vcc, {EPC//4}, v0
    s_and_saveexec_b64 s[40:41], vcc
    s_cbranch_execz P_NOLOAD
    buffer_load_dwordx4 v[8:11], v1, s[28:31], s36 offen      ; dst
    buffer_load_dwordx4 v[12:15], v1, s[24:27], s36 offen     ; src
    buffer_load_dwordx2 v[16:17], v3, s[20:23], s38 offen     ; e_attr
    buffer_load_dwordx4 v[20:23], v2, s[16:19], s37 offen     ; rhat
    buffer_load_dwordx2 v[24:25], v2, s[16:19], s37 offen offset:16
P_NOLOAD:
    s_mov_b64 exec, s[40:41]
    v_cmp_gt_u32 vcc, 256, v0
    s_and_saveexec_b64 s[42:43], vcc
    ds_write_b32 v4, v5
    s_mov_b64 exec, s[42:43]
    s_waitcnt lgkmcnt(0)
    s_barrier
    v_cmp_gt_u32 vcc, {EPC//4}, v0
    s_and_saveexec_b64 s[40:41], vcc
    s_cbranch_execz P_NOWORK
    s_waitcnt vmcnt(4)""")
    for j in range(4):
        g(f"v_mul_u32_u24 v{26+j}, 52429, v{8+j}")
    for j in range(4):
        g(f"v_lshrrev_b32 v{26+j}, 21, v{26+j}")
    for j in range(4):
        g(f"v_lshlrev_b32 v{34+j}, 2, v{26+j}")
    for j in range(4):
        g(f"ds_add_rtn_u32 v{30+j}, v{34+j}, v6")
    g("s_waitcnt vmcnt(3)")
    for j in range(4):
        g(f"v_lshl_or_b32 v{40+4*j}, v{8+j}, 14, v{12+j}")
    g("s_waitcnt vmcnt(0)")
    g("s_mov_b32 s39, 0xffff0000")

    def ext(dst, reg, hi):
        if hi:
            g(f"v_and_b32 v{dst}, s39, v{reg}")
        else:
            g(f"v_lshlrev_b32 v{dst}, 16, v{reg}")
    rh = [20, 21, 22, 23, 24, 25]
    for j in range(4):
        ext(56, 16 + (j >> 1), j & 1)
        for c in range(3):
            el = 3 * j + c
            ext(57 + c, rh[el >> 1], el & 1)
        for c in range(3):
            g(f"v_mul_f32 v{57+c}, v56, v{57+c}")
        g(f"v_cvt_pk_bf16_f32 v{41+4*j}, v56, v57")
        g(f"v_cvt_pk_bf16_f32 v{42+4*j}, v58, v59")
    g(f"s_mul_i32 s44, s2, {CAP*12}")
    g(f"s_mul_i32 s45, s2, {OVF_STRIDE}\n s_add_u32 s45, s45, {OVF_OFF}")
    for j in range(4):
        g(f"v_mul_u32_u24 v{60+j}, {NW*CAP*12}, v{26+j}")
    g("s_waitcnt lgkmcnt(0)")
    for j in range(4):
        g(f"v_mad_u32_u24 v{60+j}, v{30+j}, 12, v{60+j}")
        g(f"v_add_u32 v{60+j}, s44, v{60+j}")
    g(f"v_mov_b32 v7, {250*4}")
    for j in range(4):
        g(f"""
    v_cmp_le_u32 vcc, {CAP}, v{30+j}
    s_and_saveexec_b64 s[42:43], vcc
    s_cbranch_execz P_NOOVF{j}
    ds_add_rtn_u32 v64, v7, v6
    s_waitcnt lgkmcnt(0)
    v_mul_u32_u24 v64, 12, v64
    v_add_u32 v{60+j}, s45, v64
P_NOOVF{j}:
    s_mov_b64 exec, s[42:43]""")
    for j in range(4):
        g(f"buffer_store_dwordx3 v[{40+4*j}:{42+4*j}], v{60+j}, s[32:35], 0 offen")
    g(f"""
P_NOWORK:
    s_mov_b64 exec, s[40:41]
    s_waitcnt lgkmcnt(0)
    s_barrier
    v_cmp_gt_u32 vcc, 256, v0
    s_and_saveexec_b64 s[42:43], vcc
    s_cbranch_execz P_END
    ds_read_b32 v5, v4
    s_lshl_b32 s46, s2, 10
    s_add_u32 s46, s46, {CNT_OFF}
    s_waitcnt lgkmcnt(0)
    buffer_store_dword v5, v4, s[32:35], s46 offen
    s_branch P_END
P_OTHER:
    s_cmp_ge_u32 s2, {NW+NWF}
    s_cbranch_scc1 P_PF
    s_load_dwordx4 s[8:11], s[0:1], 40
    s_load_dwordx2 s[12:13], s[0:1], 56    ; w_si1
    v_lshrrev_b32 v1, 6, v0
    v_and_b32 v2, 63, v0                   ; lane
    s_nop 0
    v_readfirstlane_b32 s14, v1
    s_sub_u32 s15, s2, {NW}
    s_mul_i32 s15, s15, 10
    s_add_u32 s15, s15, s14                ; frag 0..159
    s_and_b32 s16, s15, 1                  ; j
    s_lshr_b32 s17, s15, 1                 ; r1 = (h*8+mw)*5+X
    s_mul_i32 s18, s17, 52429
    s_lshr_b32 s18, s18, 18                ; r2 = h*8+mw
    s_mul_i32 s19, s18, 5
    s_sub_u32 s19, s17, s19                ; X
    s_and_b32 s20, s18, 7                  ; mw
    s_lshr_b32 s21, s18, 3                 ; h
    s_lshl_b32 s22, s21, 6
    s_lshl_b32 s23, s16, 1
    s_add_u32 s22, s22, s23                ; cb = 64h + 2j
    v_and_b32 v3, 15, v2                   ; m
    v_lshrrev_b32 v4, 4, v2                ; kg
    v_lshl_add_u32 v5, v4, 4, s22
    s_waitcnt lgkmcnt(0)
    s_cmp_lt_u32 s19, 2
    s_cselect_b32 s24, s10, s12
    s_cselect_b32 s25, s11, s13
    s_mov_b32 s26, {384*256}
    s_cselect_b32 s26, {256*256}, s26
    s_mov_b32 s27, 0x20000
    s_cselect_b32 s28, 0, 2
    s_sub_u32 s28, s19, s28""")
    srd(g, 36, 8, 640 * 2)
    srd(g, 32, 6, WS_LIMIT)
    g(f"""
    s_lshl_b32 s29, s28, 7
    v_add_u32 v6, s29, v5                  ; row = X'*128 + c0
    v_lshlrev_b32 v6, 8, v6                ; *256 bytes
    s_lshl_b32 s30, s20, 4
    v_add_u32 v7, s30, v3                  ; c_out
    v_lshl_add_u32 v6, v7, 1, v6
    s_lshl_b32 s31, s19, 7
    v_add_u32 v8, s31, v5
    v_lshlrev_b32 v8, 1, v8""")
    off = [0, 4, 1, 5, 8, 12, 9, 13]
    for i in range(8):
        g(f"buffer_load_ushort v{10+i}, v6, s[24:27], 0 offen offset:{off[i]*256}")
    for i in range(8):
        g(f"buffer_load_ushort v{18+i}, v8, s[36:39], 0 offen offset:{off[i]*2}")
    g("s_waitcnt vmcnt(0)")
    for i in range(16):
        g(f"v_lshlrev_b32 v{10+i}, 16, v{10+i}")
    for i in range(8):
        g(f"v_mul_f32 v{10+i}, v{10+i}, v{18+i}")
    for i in range(4):
        g(f"v_cvt_pk_bf16_f32 v{28+i}, v{10+2*i}, v{11+2*i}")
    g(f"""
    s_lshl_b32 s40, s15, 10
    s_add_u32 s40, s40, {WF_OFF}
    v_lshlrev_b32 v9, 4, v2
    buffer_store_dwordx4 v[28:31], v9, s[32:35], s40 offen
    s_branch P_END
P_PF:""")
    if cfg.prefetch:
        J = cfg.prefetch
        rows_per = -(-cfg.pf_rows // J)
        rows_per = -(-rows_per // 20) * 20
        g(f"""
    s_load_dwordx2 s[8:9], s[0:1], 0
    s_sub_u32 s14, s2, {NW+NWF}
    s_lshr_b32 s14, s14, 3
    s_mul_i32 s14, s14, {rows_per*1024}
    v_lshrrev_b32 v1, 5, v0
    v_bfe_u32 v2, v0, 3, 2                 ; comp
    v_and_b32 v3, 7, v0
    v_lshlrev_b32 v1, 10, v1
    v_lshl_add_u32 v1, v2, 8, v1
    v_lshl_add_u32 v1, v3, 4, v1
    v_add_u32 v1, s14, v1
    s_waitcnt lgkmcnt(0)""")
        srd(g, 16, 8, min(cfg.pf_rows, N) * 1024)
        npass = rows_per // 20
        for i in range(npass):
            g(f"buffer_load_dwordx4 v[{4+4*(i%8)}:{7+4*(i%8)}], v1, s[16:19], 0 offen")
            g(f"v_add_u32 v1, {20*1024}, v1")
        g("s_waitcnt vmcnt(0)")
    g("P_END:\n s_endpgm")
    return G1, NT


def gen_main(g, cfg):
    D = cfg.D
    NF = cfg.NF
    assert D <= 8
    sX, sWS, sOUT = 4, 8, 12
    sWAVE, sMODE, sQ, sBLK, sLAST, sNB = 16, 17, 18, 19, 20, 21
    sNOVF = 22
    sIA, sIR, sIH, sIF, sInH, sCurF = 24, 25, 26, 27, 28, 29
    sSt = [32 + d for d in range(8)]
    sFt = [40 + d for d in range(8)]
    sT = [48 + i for i in range(8)]
    sE0, sE1 = 56, 58
    sV0, sV1 = 60, 62
    sH, sWO = 64, 65
    vDESC = 12
    g(f".globl {MAIN}\n.p2align 8\n.type {MAIN},@function\n{MAIN}:")
    g(f"""
    s_cmp_ge_u32 s2, {NB}
    s_cbranch_scc1 K_END
    s_load_dwordx2 s[{sX}:{sX+1}], s[0:1], 0
    s_load_dwordx2 s[{sOUT}:{sOUT+1}], s[0:1], 72
    s_load_dwordx2 s[{sWS}:{sWS+1}], s[0:1], 88
    v_lshrrev_b32 v1, 6, v0
    s_mul_i32 s{sNB}, s2, {NPB}
    s_mov_b32 s{sMODE}, 0
    v_readfirstlane_b32 s{sWAVE}, v1
    s_mov_b32 s{sLAST}, 1
    s_mov_b32 s{sQ}, 0
    s_mov_b32 s{sBLK}, 0
    s_mov_b32 s{sNOVF}, 0""")
    ACC = 80
    for i in range(48):
        g(f"v_mov_b32 v{ACC+i}, 0")
    g("s_waitcnt lgkmcnt(0)")
    srd(g, sX, sX, N * 1024)
    srd(g, sWS, sWS, WS_LIMIT)
    srd(g, sOUT, sOUT, N * 1024)
    g(f"""
K_BATCH:
    v_lshrrev_b32 v1, 4, v0              ; w
    v_and_b32 v2, 15, v0                 ; e
    s_mul_i32 s{sT[0]}, s2, {NW*CAP*12}
    v_mul_u32_u24 v3, {CAP*12}, v1
    v_mad_u32_u24 v3, v2, 24, v3
    v_add_u32 v3, s{sT[0]}, v3
    s_lshl_b32 s{sT[1]}, s2, 2
    s_add_u32 s{sT[1]}, s{sT[1]}, {CNT_OFF}
    v_lshl_add_u32 v4, v1, 10, s{sT[1]}
    s_cmp_eq_u32 s{sMODE}, 2
    s_cbranch_scc0 K_ADDR_DONE
    s_mul_i32 s{sT[0]}, s{sQ}, {OVF_STRIDE}
    s_mul_i32 s{sT[1]}, s{sBLK}, {512*12}
    s_add_u32 s{sT[0]}, s{sT[0]}, s{sT[1]}
    s_add_u32 s{sT[0]}, s{sT[0]}, {OVF_OFF}
    v_mul_u32_u24 v3, 24, v0
    v_add_u32 v3, s{sT[0]}, v3
K_ADDR_DONE:
    buffer_load_dword v5, v4, s[{sWS}:{sWS+3}], 0 offen
    buffer_load_dwordx4 v[16:19], v3, s[{sWS}:{sWS+3}], 0 offen
    buffer_load_dwordx2 v[20:21], v3, s[{sWS}:{sWS+3}], 0 offen offset:16
    v_lshlrev_b32 v6, 2, v0              ; t*4
    v_lshlrev_b32 v7, 3, v0              ; t*8
    v_mov_b32 v8, {OOB:#x}
    v_mov_b32 v10, 0
    v_mov_b32 v11, 0
    v_add_u32 v9, {SRC_L}, v6
    v_add_u32 v7, {COEF_L}, v7
    v_cmp_gt_u32 vcc, {NENT}, v0
    s_and_saveexec_b64 s[{sE0}:{sE0+1}], vcc
    ds_write_b32 v9, v8
    ds_write_b64 v7, v[10:11]
    s_mov_b64 exec, s[{sE0}:{sE0+1}]
    v_add_u32 v9, {HIST_L}, v6
    v_cmp_gt_u32 vcc, 80, v0
    s_and_saveexec_b64 s[{sE0}:{sE0+1}], vcc
    ds_write_b32 v9, v10
    s_mov_b64 exec, s[{sE0}:{sE0+1}]
    s_waitcnt lgkmcnt(0)
    s_barrier
    s_waitcnt vmcnt(0)
    v_min_u32 v6, {CAP}, v5
    v_lshlrev_b32 v7, 1, v2
    v_sub_u32 v6, v6, v7
    s_cmp_eq_u32 s{sMODE}, 0
    s_cbranch_scc1 K_LIM_FAST
    s_cmp_eq_u32 s{sMODE}, 1
    s_cbranch_scc1 K_LIM_A
    s_cmp_eq_u32 s{sMODE}, 2
    s_cbranch_scc1 K_LIM_B
    v_mov_b32 v6, 0
    s_branch K_LIM_DONE
K_LIM_A:
    v_lshrrev_b32 v7, 4, v1
    v_cmp_eq_u32 vcc, s{sQ}, v7
    s_nop 1
    v_cndmask_b32 v6, 0, v6, vcc
    s_branch K_LIM_DONE
K_LIM_B:
    s_lshl_b32 s{sT[0]}, s{sBLK}, 9
    s_sub_u32 s{sT[0]}, s{sNOVF}, s{sT[0]}
    v_lshlrev_b32 v7, 1, v0
    v_sub_u32 v6, s{sT[0]}, v7
    v_cmp_gt_u32 vcc, 256, v0
    s_nop 1
    v_cndmask_b32 v6, 0, v6, vcc
    s_branch K_LIM_DONE
K_LIM_FAST:
    v_cmp_lt_u32 vcc, {CAP}, v5
    v_mov_b32 v7, {FLAG_L}
    v_mov_b32 v8, 1
    s_and_saveexec_b64 s[{sE0}:{sE0+1}], vcc
    ds_write_b32 v7, v8
    s_mov_b64 exec, s[{sE0}:{sE0+1}]
K_LIM_DONE:
    v_bfe_u32 v22, v16, 14, 14
    v_bfe_u32 v23, v19, 14, 14
    v_subrev_u32 v22, s{sNB}, v22        ; local0
    v_subrev_u32 v23, s{sNB}, v23        ; local1
    v_lshlrev_b32 v24, 2, v22
    v_lshlrev_b32 v25, 2, v23
    v_mov_b32 v8, 1
    v_cmp_lt_i32 s[{sV0}:{sV0+1}], 0, v6
    v_cmp_gt_u32 vcc, {NPB}, v22
    s_and_b64 s[{sV0}:{sV0+1}], s[{sV0}:{sV0+1}], vcc
    v_cmp_lt_i32 s[{sV1}:{sV1+1}], 1, v6
    v_cmp_gt_u32 vcc, {NPB}, v23
    s_and_b64 s[{sV1}:{sV1+1}], s[{sV1}:{sV1+1}], vcc
    v_add_u32 v26, {HIST_L}, v24
    v_add_u32 v27, {HIST_L}, v25
    s_mov_b64 exec, s[{sV0}:{sV0+1}]
    ds_add_rtn_u32 v28, v26, v8
    s_mov_b64 exec, s[{sV1}:{sV1+1}]
    ds_add_rtn_u32 v29, v27, v8
    s_mov_b64 exec, -1
    s_waitcnt lgkmcnt(0)
    s_barrier
    v_and_b32 v1, 63, v0                 ; lane
    v_lshlrev_b32 v2, 2, v1
    v_add_u32 v3, {HIST_L}, v2
    v_mov_b32 v4, {FLAG_L}
    ds_read_b32 v5, v3
    ds_read_b32 v6, v4
    v_cmp_gt_u32 vcc, {NPB}, v1
    s_waitcnt lgkmcnt(0)
    v_add_u32 v5, 3, v5
    v_lshrrev_b32 v5, 2, v5
    v_max_u32 v5, 1, v5
    v_cndmask_b32 v5, 0, v5, vcc         ; ns
    v_mov_b32 v7, v5
    v_readfirstlane_b32 s{sT[1]}, v6     ; flag
    s_nop 0
    v_add_u32_dpp v7, v7, v7 row_shr:1 row_mask:0xf bank_mask:0xf bound_ctrl:0
    s_nop 1
    v_add_u32_dpp v7, v7, v7 row_shr:2 row_mask:0xf bank_mask:0xf bound_ctrl:0
    s_nop 1
    v_add_u32_dpp v7, v7, v7 row_shr:4 row_mask:0xf bank_mask:0xf bound_ctrl:0
    s_nop 1
    v_add_u32_dpp v7, v7, v7 row_shr:8 row_mask:0xf bank_mask:0xf bound_ctrl:0
    s_nop 1
    v_add_u32_dpp v7, v7, v7 row_bcast:15 row_mask:0xa bank_mask:0xf
    s_nop 1
    v_add_u32_dpp v7, v7, v7 row_bcast:31 row_mask:0xc bank_mask:0xf
    s_nop 1
    v_readlane_b32 s{sT[0]}, v7, 63
    v_sub_u32 v7, v7, v5
    v_lshl_or_b32 v{vDESC}, v5, 16, v7
    s_cmp_lg_u32 s{sMODE}, 0
    s_cbranch_scc1 K_SCATTER
    s_cmp_gt_u32 s{sT[0]}, {KSTEPS}
    s_cbranch_scc1 K_GOSLOW
    s_cmp_eq_u32 s{sT[1]}, 0
    s_cbranch_scc1 K_SCATTER
K_GOSLOW:
    s_mov_b32 s{sMODE}, 1
    s_mov_b32 s{sQ}, 0
    s_mov_b32 s{sLAST}, 0
    s_barrier
    s_branch K_BATCH
K_SCATTER:
    ds_bpermute_b32 v30, v24, v7
    ds_bpermute_b32 v31, v25, v7
    v_and_b32 v1, 0x3fff, v16
    v_and_b32 v2, 0x3fff, v19
    v_lshlrev_b32 v1, 10, v1
    v_lshlrev_b32 v2, 10, v2
    s_waitcnt lgkmcnt(0)
    v_lshl_add_u32 v30, v30, 2, v28      ; pos0
    v_lshl_add_u32 v31, v31, 2, v29      ; pos1
    v_lshlrev_b32 v3, 2, v30
    v_lshlrev_b32 v4, 2, v31
    v_lshlrev_b32 v5, 3, v30
    v_lshlrev_b32 v6, 3, v31
    v_add_u32 v3, {SRC_L}, v3
    v_add_u32 v4, {SRC_L}, v4
    v_add_u32 v5, {COEF_L}, v5
    v_add_u32 v6, {COEF_L}, v6
    v_mov_b32 v8, v17
    v_mov_b32 v9, v18
    s_mov_b64 exec, s[{sV0}:{sV0+1}]
    ds_write_b32 v3, v1
    ds_write_b64 v5, v[8:9]
    s_mov_b64 exec, s[{sV1}:{sV1+1}]
    ds_write_b32 v4, v2
    ds_write_b64 v6, v[20:21]
    s_mov_b64 exec, -1
    s_waitcnt lgkmcnt(0)
    s_barrier
    s_cmp_ge_u32 s{sWAVE}, 8
    s_cbranch_scc1 K_M""")

    vCONST, vSRCL, vCOEFL, vM0, vM1, vSGN, vFEAT = 1, 2, 3, 4, 5, 6, 7
    vID, vONE, vCTR = 8, 9, 10
    vSRC, vC, vADDR, vT1, vT2 = 11, 13, 14, 15, 38
    P = 16
    AW = 32
    vPK = 40
    vFA = 46
    BUF = 48
    def Pr(p, sx, r): return P + 8 * p + 4 * sx + r
    g(f"""
    s_setprio {cfg.gprio}
    v_and_b32 v15, 63, v0                ; lane
    v_and_b32 v38, 15, v15               ; n
    v_lshrrev_b32 v39, 4, v15            ; kg / q
    v_lshrrev_b32 v40, 3, v38            ; H = n>>3
    v_and_b32 v41, 7, v38                ; n&7
    v_lshlrev_b32 v{vCONST}, 8, v40
    v_lshl_add_u32 v{vCONST}, v41, 4, v{vCONST}
    v_lshlrev_b32 v{vSRCL}, 2, v39
    v_add_u32 v{vSRCL}, {SRC_L}, v{vSRCL}
    v_and_b32 v42, 3, v15                ; r
    v_lshlrev_b32 v{vCOEFL}, 3, v39
    v_lshl_add_u32 v{vCOEFL}, v42, 1, v{vCOEFL}
    v_add_u32 v{vCOEFL}, {COEF_L}, v{vCOEFL}
    v_bfe_u32 v42, v15, 2, 2             ; i'
    v_and_b32 v43, 1, v42
    v_mul_u32_u24 v43, 0xffff, v43
    v_add_u32 v43, 1, v43                ; 1 or 65536
    v_cmp_gt_u32 vcc, 2, v42
    v_mov_b32 v44, 0
    s_nop 0
    v_cndmask_b32 v{vM0}, v44, v43, vcc
    v_cndmask_b32 v{vM1}, v43, v44, vcc
    v_cmp_eq_u32 vcc, 0, v40
    v_mov_b32 v44, -1.0
    v_mov_b32 v45, 1.0
    v_cndmask_b32 v{vSGN}, v44, v45, vcc
    v_and_b32 v42, 1, v39
    v_lshl_add_u32 v42, v41, 1, v42
    v_lshrrev_b32 v43, 1, v39
    v_lshl_add_u32 v42, v43, 4, v42
    v_lshlrev_b32 v42, 2, v42
    v_lshlrev_b32 v43, 6, v40
    v_xor_b32 v42, v42, v43
    v_lshl_add_u32 v{vFEAT}, v40, 7, v42
    v_mov_b32 v{vONE}, 1
    v_mov_b32 v{vCTR}, {CTR_L}""")
    for i in range(16):
        g(f"v_mov_b32 v{P+i}, 0")
    for i in range(6):
        g(f"v_mov_b32 v{AW+i}, 0")
    for i in range(8 * D):
        g(f"v_mov_b32 v{BUF+i}, 0")
    for d in range(D):
        g(f"s_mov_b32 s{sSt[d]}, {KSTEPS*32}")
        g(f"s_mov_b32 s{sFt[d]}, -1")

    def fetch_item():
        g(f"""s_mov_b64 exec, 1
    ds_add_rtn_u32 v{vID}, v{vCTR}, v{vONE}
    s_mov_b64 exec, -1""")

    def decode_item(tag):
        g(f"""v_readfirstlane_b32 s{sT[0]}, v{vID}""")
        fetch_item()
        g(f"""s_cmp_ge_u32 s{sT[0]}, {2*NPB}
    s_cbranch_scc1 {tag}_done
    s_cmp_ge_u32 s{sT[0]}, {NPB}
    s_cselect_b32 s{sIH}, 128, 0
    s_cselect_b32 s{sT[1]}, {NPB}, 0
    s_cselect_b32 s{sT[2]}, 3, 0
    s_sub_u32 s{sT[1]}, s{sT[0]}, s{sT[1]}      ; local
    v_readlane_b32 s{sT[3]}, v{vDESC}, s{sT[1]}
    s_mul_i32 s{sIF}, s{sT[0]}, {NODE_STRIDE}    ; h*57600 + local*1440
    s_lshr_b32 s{sT[1]}, s{sT[1]}, 4
    s_add_u32 s{sT[1]}, s{sT[1]}, s{sT[2]}
    s_lshl_b32 s{sT[1]}, s{sT[1]}, 20
    s_or_b32 s{sIF}, s{sIF}, s{sT[1]}
    s_and_b32 s{sIA}, s{sT[3]}, 0xffff
    s_lshl_b32 s{sIA}, s{sIA}, 4
    s_lshr_b32 s{sIR}, s{sT[3]}, 16
    s_branch {tag}_back
{tag}_done:
    s_mov_b32 s{sIA}, {KSTEPS*16}
    s_mov_b32 s{sIR}, 1
    s_mov_b32 s{sIH}, 0
    s_mov_b32 s{sIF}, {TERM:#x}
    s_branch {tag}_back""")

    fetch_item()
    g("s_waitcnt lgkmcnt(0)")
    g("s_branch G_INIT")
    g("G_INIT_back:")
    g(f"""v_add_u32 v{vT1}, s{sIA}, v{vSRCL}
    ds_read_b32 v{vSRC}, v{vT1}
    v_add_u32 v{vT2}, s{sSt[0]}, v{vCOEFL}
    ds_read_u16 v{vC}, v{vT2}""")
    g("G_LOOP:")
    for d in range(D):
        b = BUF + 8 * d
        dn = (d + 1) % D
        g(f"""G_BODY{d}:
    s_waitcnt lgkmcnt(0)
    v_add_u32 v{vADDR}, v{vSRC}, v{vCONST}
    v_mul_u32_u24 v{AW+2}, v{vC}, v{vM0}
    v_mul_u32_u24 v{AW+3}, v{vC}, v{vM1}
    s_mov_b32 s{sCurF}, s{sFt[d]}
    s_lshl_b32 s{sSt[d]}, s{sIA}, 1
    s_mov_b32 s{sInH}, s{sIH}
    s_cmp_eq_u32 s{sIR}, 1
    s_cselect_b32 s{sFt[d]}, s{sIF}, -1
    s_cbranch_scc1 G_NEXT{d}
    s_add_u32 s{sIA}, s{sIA}, 16
    s_sub_u32 s{sIR}, s{sIR}, 1
G_NEXT{d}_back:
    v_add_u32 v{vT1}, s{sIA}, v{vSRCL}
    ds_read_b32 v{vSRC}, v{vT1}
    v_add_u32 v{vT2}, s{sSt[dn]}, v{vCOEFL}
    ds_read_u16 v{vC}, v{vT2}
    s_waitcnt vmcnt({2*(D-1)})
    v_mfma_f32_16x16x32_bf16 {v(Pr(0,0,0),4)}, {v(AW+2,4)}, {v(b,4)}, {v(Pr(0,0,0),4)}
    v_mfma_f32_16x16x32_bf16 {v(Pr(0,1,0),4)}, {v(AW,4)}, {v(b,4)}, {v(Pr(0,1,0),4)}
    v_mfma_f32_16x16x32_bf16 {v(Pr(1,0,0),4)}, {v(AW+2,4)}, {v(b+4,4)}, {v(Pr(1,0,0),4)}
    v_mfma_f32_16x16x32_bf16 {v(Pr(1,1,0),4)}, {v(AW,4)}, {v(b+4,4)}, {v(Pr(1,1,0),4)}
    buffer_load_dwordx4 {v(b,4)}, v{vADDR}, s[{sX}:{sX+3}], s{sInH} offen
    buffer_load_dwordx4 {v(b+4,4)}, v{vADDR}, s[{sX}:{sX+3}], s{sInH} offen offset:512
    s_cmp_lg_u32 s{sCurF}, -1
    s_cbranch_scc1 G_EXT{d}
G_EXT{d}_back:""")
    g("s_branch G_LOOP")
    g("G_INIT:")
    decode_item("G_INIT")
    for d in range(D):
        g(f"G_NEXT{d}:")
        decode_item(f"G_NEXT{d}")
    for d in range(D):
        g(f"""G_EXT{d}:
    s_cmp_eq_u32 s{sCurF}, {TERM:#x}
    s_cbranch_scc1 G_DONE
    s_and_b32 s{sT[0]}, s{sCurF}, 0xfffff
    s_lshr_b32 s{sT[1]}, s{sCurF}, 20
    s_lshl_b32 s{sT[1]}, s{sT[1]}, 2
    s_add_u32 s{sT[1]}, s{sT[1]}, {READY_L}
    v_add_u32 v{vFA}, s{sT[0]}, v{vFEAT}
    s_nop 1""")
        for sx in range(2):
            g(f"v_fmac_f32_dpp v{Pr(1,sx,2)}, v{Pr(1,sx,3)}, v{vSGN} row_ror:8 row_mask:0xf bank_mask:0xf")
        for sx in range(2):
            g(f"v_sub_f32_dpp v{Pr(0,sx,3)}, v{Pr(0,sx,3)}, v{Pr(1,sx,1)} quad_perm:[0,1,2,3] row_mask:0xf bank_mask:0xc")
        for sx in range(2):
            g(f"v_sub_f32_dpp v{Pr(0,sx,2)}, v{Pr(1,sx,1)}, v{Pr(0,sx,2)} row_ror:8 row_mask:0xf bank_mask:0xc")
        for sx in range(2):
            g(f"v_add_f32_dpp v{Pr(1,sx,2)}, v{Pr(0,sx,1)}, v{Pr(1,sx,2)} row_ror:8 row_mask:0xf bank_mask:0x3")
        prs = [(0, 0), (1, 0), (1, 2), (0, 3), (0, 2), (0, 1)]
        for k, (p, r) in enumerate(prs):
            g(f"v_cvt_pk_bf16_f32 v{vPK+k}, v{Pr(p,0,r)}, v{Pr(p,1,r)}")
        for k in range(5):
            g(f"ds_write_b32 v{vFA}, v{vPK+k} offset:{256*k}")
        g("s_mov_b32 exec_lo, 0x00ff00ff\n s_mov_b32 exec_hi, 0x00ff00ff")
        g(f"ds_write_b32 v{vFA}, v{vPK+5} offset:{256*5}")
        g("s_mov_b64 exec, -1")
        for i in range(16):
            g(f"v_mov_b32 v{P+i}, 0")
        g(f"""v_mov_b32 v{vFA}, s{sT[1]}
    s_waitcnt lgkmcnt(0)
    s_mov_b64 exec, 1
    ds_add_u32 v{vFA}, v{vONE}
    s_mov_b64 exec, -1
    s_branch G_EXT{d}_back""")
    g(f"""G_DONE:
    s_cmp_lg_u32 s{sLAST}, 0
    s_cbranch_scc1 K_END
    s_waitcnt vmcnt(0) lgkmcnt(0)
    s_setprio 0
    s_branch K_NEXT""")

    vM, vW, vB, vO, vO2, vR, vTM = 1, 2, 3, 4, 5, 6, 7
    F = 16
    W = 40
    def acc(u, c): return ACC + 16 * u + 4 * c
    g(f"""K_M:
    s_sub_u32 s{sT[0]}, s{sWAVE}, 8      ; mw
    v_and_b32 v8, 63, v0
    v_and_b32 v9, 15, v8                 ; col
    v_lshrrev_b32 v10, 4, v8             ; kg / q
    v_mul_u32_u24 v{vM}, {NODE_STRIDE}, v9
    v_lshl_add_u32 v{vM}, v10, 4, v{vM}
    v_lshlrev_b32 v{vW}, 4, v8
    s_mul_i32 s{sWO}, s{sT[0]}, 10240
    s_add_u32 s{sWO}, s{sWO}, {WF_OFF}
    s_lshl_b32 s{sT[1]}, s{sT[0]}, 5
    v_lshlrev_b32 v{vO}, 10, v9
    v_lshl_add_u32 v{vO}, v10, 3, v{vO}
    v_add_u32 v{vO}, s{sT[1]}, v{vO}
    v_cmp_gt_u32 vcc, 8, v9
    v_mov_b32 v11, {OOB:#x}
    s_mov_b32 s{sH}, 0
    v_cndmask_b32 v{vO2}, v11, v{vO}, vcc""")

    def load_w():
        g(f"s_add_u32 s{sT[2]}, s{sWO}, 4096\n s_add_u32 s{sT[3]}, s{sWO}, 8192")
        for i in range(10):
            so = [sWO, sT[2], sT[3]][i // 4]
            g(f"buffer_load_dwordx4 {v(W+4*i,4)}, v{vW}, s[{sWS}:{sWS+3}], s{so} offen offset:{(i%4)*1024}")
    load_w()
    g("M_HLOOP:\n s_waitcnt vmcnt(0)")
    rows = {0: [(0, 0), (4, 1)], 1: [(10, 2), (1, 3), (5, 4)], 2: [(8, 2), (2, 3), (7, 4)], 3: [(6, 2), (3, 3), (9, 4)]}
    order = []
    for stage in range(3):
        for j in range(2):
            for c in (1, 2, 3, 0):
                if stage < len(rows[c]):
                    row, X = rows[c][stage]
                    order.append((row, j, X, c))
    assert len(order) == 22
    for u in range(3):
        tgt = 16 if u < 2 else 8
        g(f"""s_mul_i32 s{sT[0]}, s{sH}, 12
    s_add_u32 s{sT[0]}, s{sT[0]}, {READY_L + 4*u}
    v_mov_b32 v{vR}, s{sT[0]}
    s_mov_b32 s{sT[2]}, {cfg.spin}
M_POLL{u}:
    ds_read_b32 v{vTM}, v{vR}
    s_waitcnt lgkmcnt(0)
    v_readfirstlane_b32 s{sT[1]}, v{vTM}
    s_sub_u32 s{sT[2]}, s{sT[2]}, 1
    s_cbranch_scc1 M_GO{u}
    s_cmp_ge_u32 s{sT[1]}, {tgt}
    s_cbranch_scc1 M_GO{u}
    s_sleep {cfg.sleep}
    s_branch M_POLL{u}
M_GO{u}:
    s_mul_i32 s{sT[0]}, s{sH}, {HALF_STRIDE}
    s_add_u32 s{sT[0]}, s{sT[0]}, {u*16*NODE_STRIDE}
    v_add_u32 v{vB}, s{sT[0]}, v{vM}""")
        def rd(i):
            row, j, X, c = order[i]
            o = row * 128 + ((j ^ (row & 1)) * 64)
            g(f"ds_read_b128 {v(F+4*(i%NF),4)}, v{vB} offset:{o}")
        for i in range(NF - 1):
            rd(i)
        for i in range(22):
            row, j, X, c = order[i]
            outstanding_after = min(22, i + NF - 1) - (i + 1)
            g(f"s_waitcnt lgkmcnt({outstanding_after})")
            g(f"v_mfma_f32_16x16x32_bf16 {v(acc(u,c),4)}, {v(W+4*(2*X+j),4)}, {v(F+4*(i%NF),4)}, {v(acc(u,c),4)}")
            if i + NF - 1 < 22:
                rd(i + NF - 1)
        if u == 2:
            g(f"""s_cmp_lg_u32 s{sH}, 0
    s_cbranch_scc1 M_NOW
    s_add_u32 s{sWO}, s{sWO}, 81920""")
            load_w()
            g("M_NOW:")
        g(f"""s_cmp_eq_u32 s{sH}, 0
    s_cbranch_scc1 M_NOFIN{u}
    s_cmp_eq_u32 s{sLAST}, 0
    s_cbranch_scc1 M_NOFIN{u}
    s_add_u32 s{sT[0]}, s{sNB}, {16*u}
    s_lshl_b32 s{sT[0]}, s{sT[0]}, 10
    v_add_u32 v{vB}, s{sT[0]}, v{vO2 if u == 2 else vO}
    s_mov_b32 s{sT[1]}, 0xbfb8aa3b
    s_nop 4""")
        for jj in range(4):
            g(f"v_mul_f32 v{F+jj}, s{sT[1]}, v{acc(u,0)+jj}")
        for jj in range(4):
            g(f"v_exp_f32 v{F+jj}, v{F+jj}")
        for jj in range(4):
            g(f"v_add_f32 v{F+jj}, 1.0, v{F+jj}")
        for jj in range(4):
            g(f"v_rcp_f32 v{F+jj}, v{F+jj}")
        g(f"v_cvt_pk_bf16_f32 v{F+4}, v{acc(u,0)}, v{acc(u,0)+1}")
        g(f"v_cvt_pk_bf16_f32 v{F+5}, v{acc(u,0)+2}, v{acc(u,0)+3}")
        for c in range(1, 4):
            for jj in range(4):
                g(f"v_mul_f32 v{acc(u,c)+jj}, v{acc(u,c)+jj}, v{F+jj}")
        for c in range(1, 4):
            g(f"v_cvt_pk_bf16_f32 v{F+4+2*c}, v{acc(u,c)}, v{acc(u,c)+1}")
            g(f"v_cvt_pk_bf16_f32 v{F+5+2*c}, v{acc(u,c)+2}, v{acc(u,c)+3}")
        for c in range(4):
            g(f"buffer_store_dwordx2 {v(F+4+2*c,2)}, v{vB}, s[{sOUT}:{sOUT+3}], 0 offen offset:{256*c}")
        g(f"M_NOFIN{u}:")
    g(f"""s_cmp_lg_u32 s{sH}, 0
    s_cbranch_scc1 M_DONE
    s_mov_b32 s{sH}, 1
    s_branch M_HLOOP
M_DONE:
    s_cmp_lg_u32 s{sLAST}, 0
    s_cbranch_scc1 K_END
    s_waitcnt vmcnt(0) lgkmcnt(0)
K_NEXT:
    s_barrier
    s_cmp_eq_u32 s{sMODE}, 1
    s_cbranch_scc0 K_NEXT_B
    s_add_u32 s{sQ}, s{sQ}, 1
    s_cmp_lt_u32 s{sQ}, 4
    s_cbranch_scc1 K_BATCH
    s_mov_b32 s{sMODE}, 2
    s_mov_b32 s{sQ}, 0
    s_mov_b32 s{sBLK}, 0
    s_branch K_NEXT_CHK
K_NEXT_B:
    s_add_u32 s{sBLK}, s{sBLK}, 1
K_NEXT_CHK:
    s_cmp_ge_u32 s{sQ}, {NW}
    s_cbranch_scc1 K_NEXT_END
    s_lshl_b32 s{sT[0]}, s{sQ}, 10
    s_add_u32 s{sT[0]}, s{sT[0]}, {CNT_OFF + 250*4}
    s_add_u32 s{sT[2]}, s{sWS}, s{sT[0]}
    s_addc_u32 s{sT[3]}, s{sWS+1}, 0
    s_load_dword s{sNOVF}, s[{sT[2]}:{sT[3]}], 0
    s_waitcnt lgkmcnt(0)
    s_lshl_b32 s{sT[0]}, s{sBLK}, 9
    s_cmp_lt_u32 s{sT[0]}, s{sNOVF}
    s_cbranch_scc1 K_BATCH
    s_add_u32 s{sQ}, s{sQ}, 1
    s_mov_b32 s{sBLK}, 0
    s_branch K_NEXT_CHK
K_NEXT_END:
    s_mov_b32 s{sMODE}, 3
    s_mov_b32 s{sLAST}, 1
    s_branch K_BATCH
K_END:
    s_endpgm""")


def generate(cfg=None):
    cfg = cfg or Cfg()
    g = A()
    body = A()
    G1, NT1 = gen_prep(body, cfg)
    gen_main(body, cfg)
    hdr = open("gather_scatter__tensor_product_equiv_equiformer__graph.s.ref").read().split("\n")
    for l in hdr:
        if l.startswith("; Kernarg") or l.startswith(";   offset"):
            g(l)
    g(f"; @launch kernel={PREP} grid=({G1},1,1) block=({NT1},1,1) lds=1024")
    g(f"; @launch kernel={MAIN} grid=({NB},1,1) block=(1024,1,1) lds={LDS_MAIN}")
    g('.amdgcn_target "amdgcn-amd-amdhsa--gfx950"\n.text')
    g(body.text())
    g('.section .rodata,"a"\n.p2align 6')
    g(kernel_desc(PREP, 72, 64))
    g(".p2align 6")
    g(kernel_desc(MAIN, 128, 80))
    txt = g.text()
    out = []
    for l in txt.split("\n"):
        t = l.strip()
        if not t:
            continue
        if t.startswith(";") or t.startswith(".") or t.endswith(":"):
            out.append(t)
        else:
            out.append("    " + t)
    return "\n".join(out) + "\n"


if __name__ == "__main__":
    kw = eval("dict(%s)" % (sys.argv[2] if len(sys.argv) > 2 else ""))
    txt = generate(Cfg(**kw))
    open(sys.argv[1], "w").write(txt)
```
